```python
import torch

def _softmax(x, axis=-1):
    return torch.softmax(x, dim=axis)
def _gelu(x):
    return torch.nn.functional.gelu(x, approximate="tanh")
def _silu(x):
    return torch.nn.functional.silu(x)
def _sigmoid(x):
    return torch.sigmoid(x)
def _layernorm(x, axis=-1, eps=1e-5):
    m = x.mean(dim=axis, keepdim=True)
    v = x.var(dim=axis, keepdim=True, unbiased=False)
    return (x - m) / torch.sqrt(v + eps)
def _scatter_add(tgt, idx, src, axis=0):
    return tgt.clone().index_add_(axis, idx, src)
def _segment_sum(src, seg, n):
    out = torch.zeros((n,) + src.shape[1:], dtype=src.dtype)
    return out.index_add_(0, seg, src)
def _pad(x, pw):
    flat = tuple(v for pair in reversed(pw) for v in pair)
    return torch.nn.functional.pad(x, flat)

kernel_name = 'parallel_sum__linear_kernel_hedgehog__glu_gated_reglu__prompt'

def setup_inputs():

    _w = (lambda a: (lambda t: t.to(torch.bfloat16) if t.is_floating_point() else t)(torch.as_tensor(a)))
    def _A_setup():
        B, S, D, H = 1, 2048, 512, 32
        Dh = D // H
        return {
            "x": _w((lambda *s: torch.randn(*s, dtype=torch.bfloat16) * 0.05)(B, S, D)),
            "wqkv": _w((lambda *s: torch.randn(*s, dtype=torch.bfloat16) * 0.2)(D, 3 * D)),
            "w_phi": _w((lambda *s: torch.randn(*s, dtype=torch.bfloat16) * 0.2)(H, Dh, Dh) * (Dh ** -0.5)),
            "wo": _w((lambda *s: torch.randn(*s, dtype=torch.bfloat16) * 0.05)(D, D)),
        }
    _A_in = _A_setup()

    def _B_setup():
        B, S, D, F = 1, 2048, 512, 1376
        return {
            "x": _w((lambda *s: torch.randn(*s, dtype=torch.bfloat16) * 0.05)(B, S, D)),
            "W_gate": _w((lambda *s: torch.randn(*s, dtype=torch.bfloat16) * 0.4)(D, F) * (2.0 / D) ** 0.5),
            "W_up": _w((lambda *s: torch.randn(*s, dtype=torch.bfloat16) * 0.4)(D, F) * (2.0 / D) ** 0.5),
            "W_down": _w((lambda *s: torch.randn(*s, dtype=torch.bfloat16) * 0.4)(F, D) * (1.0 / F) ** 0.5),
        }
    _B_in = _B_setup()

    return {
        "A_x": _A_in["x"],
        "A_wqkv": _A_in["wqkv"],
        "A_w_phi": _A_in["w_phi"],
        "A_wo": _A_in["wo"],
        "B_x": _B_in["x"],
        "B_W_gate": _B_in["W_gate"],
        "B_W_up": _B_in["W_up"],
        "B_W_down": _B_in["W_down"],
    }

def reference(A_x, A_wqkv, A_w_phi, A_wo, B_x, B_W_gate, B_W_up, B_W_down):
    def _A_ref(x, wqkv, w_phi, wo):
        B, S, D = x.shape
        H = 32; Dh = D // H
        qkv = (lambda x, *d: x.permute(*d))((x @ wqkv).reshape(B, S, 3, H, Dh), 2, 0, 3, 1, 4)
        q, k, v = qkv[0], qkv[1], qkv[2]
        pq = torch.einsum("bhsd,hdf->bhsf", q, w_phi)
        pk = torch.einsum("bhsd,hdf->bhsf", k, w_phi)
        phi_q = torch.concatenate([_softmax(pq, axis=-1), _softmax(-pq, axis=-1)], axis=-1)
        phi_k = torch.concatenate([_softmax(pk, axis=-1), _softmax(-pk, axis=-1)], axis=-1)
        kv = torch.einsum("bhsf,bhsd->bhfd", phi_k, v)
        z  = torch.einsum("bhsf->bhf", phi_k)
        num = torch.einsum("bhqf,bhfd->bhqd", phi_q, kv)
        den = torch.einsum("bhqf,bhf->bhq", phi_q, z)[..., None] + 1e-6
        o = num / den
        return (lambda x, *d: x.permute(*d))(o, 0, 2, 1, 3).reshape(B, S, D) @ wo

    def _B_ref(x, W_gate, W_up, W_down):
        gate = torch.einsum("bsd,df->bsf", x, W_gate)
        up = torch.einsum("bsd,df->bsf", x, W_up)
        gate = gate * (lambda x, dt: x.to(dt))(gate > 0, gate.dtype)
        h = gate * up
        return torch.einsum("bsf,fd->bsd", h, W_down)

    x = A_x
    xn = _layernorm(x, axis=-1)
    return x + _A_ref(xn, A_wqkv, A_w_phi, A_wo) + _B_ref(xn, B_W_gate, B_W_up, B_W_down)
```

```python
import re

_REG = re.compile(r"^(-|\|)?(abs\()?([vsa])(\d+)\)?\|?$")
_RNG = re.compile(r"^(-)?([vsa])\[(\d+):(\d+)\]$")


def regs_of(op):
    op = op.strip()
    m = _RNG.match(op)
    if m:
        k = m.group(2)
        return {(k, i) for i in range(int(m.group(3)), int(m.group(4)) + 1)}
    m = _REG.match(op)
    if m:
        return {(m.group(3), int(m.group(4)))}
    if op in ("vcc", "vcc_lo", "vcc_hi"):
        return {("x", "vcc")}
    if op in ("exec", "exec_lo", "exec_hi"):
        return {("x", "exec")}
    if op == "m0":
        return {("x", "m0")}
    return set()


def split_ops(rest):
    out, depth, cur = [], 0, ""
    for c in rest:
        if c == "[":
            depth += 1
        if c == "]":
            depth -= 1
        if c == "," and depth == 0:
            out.append(cur.strip())
            cur = ""
        else:
            cur += c
    if cur.strip():
        out.append(cur.strip())
    return out


TRANS = ("v_exp_f32", "v_log_f32", "v_rcp_f32", "v_rsq_f32", "v_sqrt_f32", "v_sin_f32", "v_cos_f32")


class Ins:
    __slots__ = ("text", "mn", "kind", "wr", "rd", "A", "B", "C", "slots", "label", "target", "mods")

    def __init__(self, text):
        self.text = text
        self.label = None
        self.target = None
        self.wr, self.rd = set(), set()
        self.A = self.B = self.C = set()
        self.slots = 1
        t = text.split(";")[0].split("//")[0].strip()
        if t.endswith(":"):
            self.label = t[:-1]
            self.kind = "label"
            self.mn = ""
            self.slots = 0
            return
        if t.startswith(".") or not t:
            self.kind = "dir"
            self.mn = ""
            self.slots = 0
            return
        parts = t.split(None, 1)
        mn = parts[0]
        self.mn = mn
        rest = parts[1] if len(parts) > 1 else ""
        ops = split_ops(rest)
        last_extra = []
        if ops:
            tail = ops[-1].split()
            ops[-1] = tail[0]
            last_extra = tail[1:]
        self.mods = last_extra
        R = [regs_of(o) for o in ops]
        if mn == "s_nop":
            self.kind = "nop"
            self.slots = int(ops[0], 0) + 1
        elif mn.startswith("v_mfma"):
            self.kind = "mfma"
            self.wr = R[0]
            self.A, self.B, self.C = R[1], R[2], R[3]
            self.rd = R[1] | R[2] | R[3]
        elif mn.startswith("v_cmp"):
            self.kind = "valu"
            self.wr = R[0]
            self.rd = set().union(*R[1:])
        elif mn.startswith("v_readfirstlane") or mn.startswith("v_readlane"):
            self.kind = "valu"
            self.wr = R[0]
            self.rd = set().union(*R[1:])
        elif mn.startswith("v_permlane") and "swap" in mn:
            self.kind = "valu"
            self.wr = R[0] | R[1]
            self.rd = R[0] | R[1]
        elif mn.startswith(("v_add_co", "v_sub_co", "v_addc_co", "v_subb_co", "v_subrev_co")):
            self.kind = "valu"
            self.wr = R[0] | R[1]
            self.rd = set().union(*R[2:])
        elif mn.startswith("v_"):
            self.kind = "valu"
            self.wr = R[0]
            self.rd = set().union(*R[1:]) if len(R) > 1 else set()
            if mn.startswith(("v_fmac", "v_dot2c", "v_writelane", "v_pk_fmac")):
                self.rd |= R[0]
            if mn.startswith("v_cndmask") and len(ops) == 3:
                self.rd |= {("x", "vcc")}
        elif mn.startswith("ds_"):
            self.kind = "ds"
            if mn.startswith(("ds_read", "ds_bpermute", "ds_permute", "ds_swizzle")) or "_rtn" in mn:
                self.wr = R[0]
                self.rd = set().union(*R[1:])
            else:
                self.rd = set().union(*R)
        elif mn.startswith("buffer_"):
            self.kind = "vmem"
            lds = "lds" in last_extra
            if mn.startswith(("buffer_wbl2", "buffer_inv")):
                pass
            elif lds:
                self.rd = set().union(*R) | {("x", "m0")}
            elif mn.startswith("buffer_load"):
                self.wr = R[0]
                self.rd = set().union(*R[1:])
            else:
                self.rd = set().union(*R)
                if mn.startswith("buffer_atomic") and "sc0" in last_extra:
                    self.wr = R[0]
        elif mn.startswith("global_"):
            self.kind = "vmem"
            if mn.startswith("global_load_lds"):
                self.rd = set().union(*R) | {("x", "m0")}
            elif mn.startswith("global_load"):
                self.wr = R[0]
                self.rd = set().union(*R[1:])
            elif mn.startswith("global_atomic") and "sc0" in last_extra:
                self.wr = R[0]
                self.rd = set().union(*R[1:])
            else:
                self.rd = set().union(*R)
        elif mn.startswith("s_"):
            self.kind = "salu"
            if mn.startswith(("s_cbranch", "s_branch")):
                self.kind = "branch"
                self.target = ops[0]
            elif mn.startswith(("s_waitcnt", "s_barrier", "s_sleep", "s_setprio", "s_endpgm", "s_cmp", "s_bitcmp")):
                self.rd = set().union(*R) if R else set()
            elif mn.startswith(("s_setpc",)):
                self.rd = R[0]
            elif "saveexec" in mn:
                self.wr = R[0] | {("x", "exec")}
                self.rd = set().union(*R[1:])
            else:
                self.wr = R[0] if R else set()
                self.rd = set().union(*R[1:]) if len(R) > 1 else set()
        else:
            raise ValueError("unknown instruction: " + text)

    def is_store_wide(self):
        return self.kind == "vmem" and ("store_dwordx4" in self.mn or "store_dwordx3" in self.mn)


def mfma_passes(mn):
    if "32x32x16" in mn:
        return 8
    if "16x16x32" in mn:
        return 4
    raise ValueError(mn)


def need_waits(p, c):
    n = 0
    vw = {r for r in p.wr if r[0] in "va"}
    sw = {r for r in p.wr if r[0] == "s" or r == ("x", "vcc")}
    if p.kind == "valu":
        if c.kind == "mfma" and vw & c.rd:
            n = max(n, 2)
        if c.kind == "valu":
            if c.mn.startswith("v_permlane") and vw & c.rd:
                n = max(n, 2)
            if ("_dpp" in c.mn or any(m.startswith(("row_", "quad_perm")) for m in c.mods)) and vw & c.rd:
                n = max(n, 2)
            if c.mn.startswith(("v_readfirstlane", "v_readlane")) and vw & c.rd:
                n = max(n, 1)
            if sw & c.rd:
                n = max(n, 4 if c.mn.startswith(("v_readlane", "v_writelane")) else 2)
            if p.mn.startswith(TRANS) and vw & c.rd:
                n = max(n, 1)
            if p.mn.startswith("v_dot2") and (vw & (c.rd | c.wr)):
                same = c.mn == p.mn and (vw & c.wr) and not (vw & (c.rd - c.wr))
                if not same:
                    n = max(n, 3)
            if any(m.startswith("op_sel") for m in p.mods) and not p.mn.startswith("v_pk_") and vw & c.rd:
                n = max(n, 1)
        if c.kind == "vmem" and sw & c.rd:
            n = max(n, 5)
        if c.kind in ("vmem", "ds", "mfma") and p.mn.startswith("v_dot2") and vw & c.rd:
            n = max(n, 3)
        if c.kind == "salu" and sw & c.rd:
            n = max(n, 2)
        if c.kind == "branch" and ("vcc" in c.mn) and ("x", "vcc") in p.wr:
            n = max(n, 5)
        if ("x", "exec") in p.wr and c.kind == "mfma":
            n = max(n, 4)
    if p.kind == "mfma":
        ps = mfma_passes(p.mn)
        big = {4: 8, 8: 12}[ps]
        if c.kind == "mfma":
            if p.wr & (c.A | c.B):
                n = max(n, big)
            if p.wr & c.C:
                if not (p.wr == c.C and mfma_passes(c.mn) == ps):
                    n = max(n, {4: 6, 8: 10}[ps])
            if p.wr & c.wr and not (p.wr & c.C):
                n = max(n, big)
        elif c.kind in ("valu", "vmem", "ds"):
            if p.wr & (c.rd | c.wr):
                n = max(n, big)
            if c.kind == "valu" and p.C & c.wr:
                n = max(n, {4: 3, 8: 7}[ps])
    if p.kind == "salu" and ("x", "m0") in p.wr and ("x", "m0") in c.rd and c.kind in ("vmem", "ds"):
        n = max(n, 1)
    if p.is_store_wide():
        data = set()
        for r in p.rd:
            if r[0] in "va":
                data.add(r)
        if c.kind == "valu" and data & c.wr:
            n = max(n, 2)
        elif data & c.wr:
            n = max(n, 1)
    return n


MAXD = 13


class Asm:
    def __init__(self):
        self.lines = []
        self.uid = 0

    def __call__(self, text):
        for l in text.split("\n"):
            if l.strip():
                self.lines.append(l.strip())

    def label(self, name):
        self.lines.append(name + ":")

    def newlabel(self, base):
        self.uid += 1
        return f"L_{base}_{self.uid}"

    def finalize(self):
        ins = [Ins(l) for l in self.lines]
        inserted = 0
        for _round in range(20):
            labels = {x.label: i for i, x in enumerate(ins) if x.kind == "label"}
            hist_in = [set() for _ in range(len(ins) + 1)]
            hist_in[0].add(())
            work = [0]
            fix = {}
            seen = [set() for _ in range(len(ins) + 1)]
            while work:
                i = work.pop()
                if i >= len(ins):
                    continue
                todo = hist_in[i] - seen[i]
                if not todo:
                    continue
                seen[i] |= todo
                x = ins[i]
                outs = set()
                for h in todo:
                    if x.slots and x.kind not in ("nop",):
                        for (pi, d) in h:
                            need = need_waits(ins[pi], x)
                            if need > d:
                                fix[i] = max(fix.get(i, 0), need - d)
                    nh = tuple((pi, d + x.slots) for (pi, d) in h if d + x.slots < MAXD)
                    if x.kind in ("valu", "mfma", "salu", "vmem") and (x.wr or x.is_store_wide()):
                        nh = nh + ((i, 0),)
                    outs.add(nh)
                succ = []
                if x.kind == "branch":
                    if x.target in labels:
                        succ.append(labels[x.target])
                    if x.mn != "s_branch":
                        succ.append(i + 1)
                elif x.mn in ("s_endpgm", "s_setpc_b64"):
                    succ = []
                else:
                    succ = [i + 1]
                for s in succ:
                    merged = self._merge(hist_in[s], outs)
                    if merged != hist_in[s]:
                        hist_in[s] = merged
                        seen[s] = set()
                        work.append(s)
            if not fix:
                break
            new = []
            for i, x in enumerate(ins):
                if i in fix:
                    k = fix[i]
                    while k > 0:
                        t = min(k, 16)
                        new.append(Ins(f"s_nop {t - 1}"))
                        inserted += 1
                        k -= t
                new.append(x)
            ins = new
        else:
            raise RuntimeError("hazard pass did not converge")
        self.nops_inserted = inserted
        out = []
        for x in ins:
            out.append(x.text if x.kind == "label" else "  " + x.text)
        return "\n".join(out) + "\n"

    @staticmethod
    def _merge(old, new):
        best = {}
        for h in list(old) + list(new):
            for (pi, d) in h:
                if pi not in best or d < best[pi]:
                    best[pi] = d
        return {tuple(sorted(best.items()))}
```

```python
import sys
sys.path.insert(0, "dev")
from asmlib import Asm

NAME = "parallel_sum__linear_kernel_hedgehog__glu_gated_reglu__prompt_kernel"

WS_H = 0
WS_O = 0x600000
WS_Z = 0x800000
Z_KV = 0
Z_CS = 69632
Z_CNT = 92160
Z_SIZE = 100352
CNT_CS, CNT_KV, CNT_H, CNT_O = 0, 16, 24, 40
WS_STAMP = 0x880000
WS_SIZE = 0x900000
N_ZEROERS = 8
SPIN_LIMIT = 1 << 15
OOB = 0x7ff00000

F_WSLOT = 22656
F_UPOFF = 11392
F_NW = 5
F_XBASE = F_NW * F_WSLOT
XSLOT = 16384
F_NX = 3
F_DUMMY = F_XBASE + F_NX * XSLOT
A_SLOT = 40960
A_NS = 4
EP_STAT = 106496
EP_ONES = 108544
EP_PHI = 112640
EP_V = EP_PHI + 32768
LDS_BYTES = 163840
S1N = 13
S2N = 17
UB = (0, 22, 44, 65)

S_X, S_WQKV, S_WPHI, S_WO, S_BX, S_WG, S_WU, S_WD = 8, 10, 12, 14, 16, 18, 20, 22
S_OUT, S_DBG, S_WSP = 24, 26, 28
s_exec0 = 30
R_X, R_W0, R_W1, R_W2, R_WS, R_OUT, R_WD, R_WO = 32, 36, 40, 44, 48, 52, 56, 60
s_stamp = 64
(s_w, s_tt, s_ch, s_m, s_m8, s_mh, s_nt, s_nq, s_it, s_xd, s_wd, s_xr0, s_xr1, s_wr0, s_wr1,
 s_xso, s_wso, s_t0, s_t1, s_t2, s_t3, s_t4, s_t5, s_pw0, s_pw1, s_pw2, s_su, s_ntile, s_g,
 s_jx, s_jw, s_spin, s_m2, s_ct, s_ttg) = range(66, 101)


def srd(r):
    return f"s[{r}:{r + 3}]"


def vr(b, n=1):
    return f"v{b}" if n == 1 else f"v[{b}:{b + n - 1}]"


def sp(b):
    return f"s[{b}:{b + 1}]"


MFMA = "v_mfma_f32_32x32x16_bf16"


class Gen:
    V_LANE = 1
    V_ZERO = 2
    V_XD = 3
    V_WD = 4
    V_XA = 7
    V_XR = 11
    V_WB = 15
    V_WR = 16
    V_ST = 18
    V_T = 19
    V_CS = 24
    V_FLAG = 26
    V_RSTD = 27
    V_T2 = 28
    V_XF = 32
    V_WF = 40
    V_CA = 88
    V_MB = 92
    V_ACC = 96
    V_E = 192

    def __init__(self, stop_after=None, stamps=False):
        self.a = Asm()
        self.stop_after = stop_after
        self.stamps = stamps
        self.nstamp = 0

    def mk_srd(self, r, ptr, size):
        a = self.a
        a(f"s_mov_b32 s{r}, s{ptr}")
        a(f"s_and_b32 s{r + 1}, s{ptr + 1}, 0xffff")
        a(f"s_mov_b32 s{r + 2}, {size}")
        a(f"s_mov_b32 s{r + 3}, 0x20000")

    def ring_inc(self, s, step, lo, hi):
        a = self.a
        a(f"s_add_u32 s{s}, s{s}, {step}")
        a(f"s_cmp_ge_u32 s{s}, {hi}")
        a(f"s_cselect_b32 s{s_t0}, {hi - lo}, 0")
        a(f"s_sub_u32 s{s}, s{s}, s{s_t0}")

    def stamp(self, idx):
        if not self.stamps:
            return
        a = self.a
        sk = a.newlabel("stamp")
        a(f"s_cmp_eq_u32 s{s_w}, 0")
        a(f"s_cbranch_scc0 {sk}")
        a(f"s_memrealtime {sp(s_stamp)}")
        a("s_waitcnt lgkmcnt(0)")
        a(f"s_lshl_b32 s{s_t0}, s2, 7")
        a(f"s_add_u32 s{s_t0}, s{s_t0}, {WS_STAMP + 4 * idx}")
        a(f"v_mov_b32 v254, s{s_t0}")
        a(f"v_mov_b32 v255, s{s_stamp}")
        a(f"buffer_store_dword v255, v254, {srd(R_WS)}, 0 offen")
        a.label(sk)

    def exec_one(self):
        self.a(f"s_mov_b64 {sp(s_exec0)}, exec")
        self.a("s_mov_b64 exec, 1")

    def exec_low32(self):
        self.a(f"s_mov_b64 {sp(s_exec0)}, exec")
        self.a("s_mov_b32 exec_lo, -1")
        self.a("s_mov_b32 exec_hi, 0")

    def exec_restore(self):
        self.a(f"s_mov_b64 exec, {sp(s_exec0)}")

    def spin(self, load, target, vtmp, tag):
        a = self.a
        L, D = a.newlabel("spin" + tag), a.newlabel("spun" + tag)
        a(f"s_mov_b32 s{s_spin}, 0")
        a.label(L)
        a(load)
        a("s_waitcnt vmcnt(0)")
        a(f"v_readfirstlane_b32 s{s_t0}, v{vtmp}")
        a(f"s_cmp_ge_u32 s{s_t0}, {target}")
        a(f"s_cbranch_scc1 {D}")
        a(f"s_add_u32 s{s_spin}, s{s_spin}, 1")
        a(f"s_cmp_ge_u32 s{s_spin}, {SPIN_LIMIT}")
        a(f"s_cbranch_scc1 {D}")
        a("s_sleep 2")
        a(f"s_branch {L}")
        a.label(D)

    def counter_off(self, s_idx, base, vdst):
        a = self.a
        a(f"s_add_u32 s{s_t1}, s{s_idx}, {base}")
        a(f"s_lshl_b32 s{s_t1}, s{s_t1}, 7")
        a(f"s_add_u32 s{s_t1}, s{s_t1}, {WS_Z + Z_CNT}")
        a(f"v_mov_b32 v{vdst}, s{s_t1}")

    def wait_counter(self, s_idx, base, target, vo, vt, tag):
        a = self.a
        sk = a.newlabel("w" + tag)
        a(f"s_cmp_eq_u32 s{s_w}, 0")
        a(f"s_cbranch_scc0 {sk}")
        self.counter_off(s_idx, base, vo)
        self.spin(f"buffer_load_dword v{vt}, v{vo}, {srd(R_WS)}, 0 offen sc1", target, vt, tag)
        a.label(sk)
        a("s_barrier")

    def signal_counter(self, s_idx, base, vo, vt):
        a = self.a
        sk = a.newlabel("sig")
        a(f"s_cmp_eq_u32 s{s_w}, 0")
        a(f"s_cbranch_scc0 {sk}")
        self.counter_off(s_idx, base, vo)
        a(f"v_mov_b32 v{vt}, 1")
        self.exec_one()
        a(f"buffer_atomic_add v{vt}, v{vo}, {srd(R_WS)}, 0 offen")
        self.exec_restore()
        a.label(sk)

    def dma(self, voff, rsrc, soff, m0src):
        a = self.a
        a(f"s_mov_b32 m0, {m0src}")
        a(f"buffer_load_dwordx4 v{voff}, {srd(rsrc)}, {soff} offen lds")

    def prologue(self):
        a = self.a
        a("s_cmp_ge_u32 s2, 256")
        a("s_cbranch_scc1 L_end")
        a("s_load_dwordx16 s[8:23], s[0:1], 0")
        a("s_load_dwordx4 s[24:27], s[0:1], 64")
        a("s_load_dwordx2 s[28:29], s[0:1], 80")
        a(f"v_and_b32 v{self.V_LANE}, 63, v0")
        a(f"v_lshrrev_b32 v{self.V_T}, 6, v0")
        a(f"v_mov_b32 v{self.V_ZERO}, 0")
        a(f"v_readfirstlane_b32 s{s_w}, v{self.V_T}")
        a(f"s_and_b32 s{s_t0}, s2, 7")
        a(f"s_lshr_b32 s{s_t1}, s2, 3")
        a(f"s_and_b32 s{s_mh}, s{s_t0}, 1")
        a(f"s_lshr_b32 s{s_nq}, s{s_t0}, 1")
        a(f"s_and_b32 s{s_m8}, s{s_t1}, 7")
        a(f"s_lshr_b32 s{s_nt}, s{s_t1}, 3")
        a(f"s_lshl_b32 s{s_m}, s{s_mh}, 3")
        a(f"s_add_u32 s{s_m}, s{s_m}, s{s_m8}")
        a(f"s_and_b32 s{s_tt}, s{s_w}, 3")
        a(f"s_lshr_b32 s{s_ch}, s{s_w}, 2")
        a(f"s_and_b32 s{s_ct}, s{s_t1}, 7")
        a(f"s_lshr_b32 s{s_t2}, s{s_t1}, 3")
        a(f"s_lshl_b32 s{s_ttg}, s{s_t0}, 3")
        a(f"s_lshl_b32 s{s_t2}, s{s_t2}, 1")
        a(f"s_add_u32 s{s_ttg}, s{s_ttg}, s{s_t2}")
        a(f"s_lshr_b32 s{s_m2}, s{s_ttg}, 2")
        a(f"s_add_u32 s{s_ttg}, s{s_ttg}, s{s_ch}")
        t, u = self.V_T, self.V_T + 1
        a(f"v_lshrrev_b32 v{t}, 3, v{self.V_LANE}")
        a(f"s_lshl_b32 s{s_t0}, s{s_w}, 3")
        a(f"v_add_u32 v{t}, s{s_t0}, v{t}")
        a(f"v_lshrrev_b32 v{u}, 1, v{t}")
        a(f"v_xor_b32 v{u}, v{u}, v{self.V_LANE}")
        a(f"v_and_b32 v{u}, 7, v{u}")
        a(f"v_lshlrev_b32 v{u}, 4, v{u}")
        a(f"v_lshlrev_b32 v{t}, 10, v{t}")
        a(f"v_add_u32 v{self.V_XD}, v{t}, v{u}")
        a(f"s_lshl_b32 s{s_xso}, s{s_m}, 17")
        a("s_waitcnt lgkmcnt(0)")
        self.mk_srd(R_X, S_X, 2048 * 1024)
        self.mk_srd(R_WS, S_WSP, WS_SIZE)
        self.stamp(0)

    def zero_region(self):
        a = self.a
        sk = a.newlabel("zskip")
        a(f"s_cmp_lt_u32 s2, {N_ZEROERS}")
        a(f"s_cbranch_scc0 {sk}")
        z = self.V_E
        for r in range(4):
            a(f"v_mov_b32 v{z + r}, 0")
        per = Z_SIZE // N_ZEROERS
        o = self.V_T
        a(f"s_mul_i32 s{s_t0}, s2, {per}")
        a(f"s_add_u32 s{s_t0}, s{s_t0}, {WS_Z}")
        a(f"v_lshlrev_b32 v{o}, 4, v0")
        a(f"buffer_store_dwordx4 {vr(z, 4)}, v{o}, {srd(R_WS)}, s{s_t0} offen sc1")
        a(f"v_cmp_gt_u32 vcc, {(per - 8192) // 16}, v0")
        a(f"s_and_saveexec_b64 {sp(s_exec0)}, vcc")
        zs = a.newlabel("zs")
        a(f"s_cbranch_execz {zs}")
        a(f"s_add_u32 s{s_t0}, s{s_t0}, 8192")
        a(f"buffer_store_dwordx4 {vr(z, 4)}, v{o}, {srd(R_WS)}, s{s_t0} offen sc1")
        a.label(zs)
        self.exec_restore()
        a.label(sk)

    def xfrag_addrs(self, xbase, swap_by_mh):
        a = self.a
        t, u, w = self.V_T, self.V_T + 1, self.V_T + 2
        a(f"v_and_b32 v{t}, 31, v{self.V_LANE}")
        a(f"s_lshl_b32 s{s_t0}, s{s_tt}, 5")
        a(f"v_add_u32 v{t}, s{s_t0}, v{t}")
        a(f"v_lshrrev_b32 v{u}, 1, v{t}")
        a(f"v_and_b32 v{u}, 7, v{u}")
        a(f"v_lshrrev_b32 v{w}, 5, v{self.V_LANE}")
        a(f"v_xor_b32 v{u}, v{u}, v{w}")
        a(f"v_lshlrev_b32 v{u}, 4, v{u}")
        a(f"v_lshlrev_b32 v{t}, 7, v{t}")
        a(f"v_add_u32 v{t}, v{t}, v{u}")
        if swap_by_mh:
            a(f"s_lshl_b32 s{s_t0}, s{s_mh}, 6")
            a(f"v_xor_b32 v{t}, s{s_t0}, v{t}")
        for p in range(4):
            a(f"v_xor_b32 v{u}, {32 * p}, v{t}")
            a(f"v_add_u32 v{self.V_XA + p}, {xbase}, v{u}")

    def dma_x(self, lo, hi, step):
        a = self.a
        a(f"s_add_u32 s{s_t1}, s{s_jx}, s{s_m8}")
        a(f"s_and_b32 s{s_t1}, s{s_t1}, 7")
        a(f"s_lshl_b32 s{s_t1}, s{s_t1}, 7")
        a(f"s_add_u32 s{s_t1}, s{s_t1}, s{s_xso}")
        a(f"s_cmp_ge_u32 s{s_jx}, 8")
        a(f"s_cselect_b32 s{s_t1}, {OOB}, s{s_t1}")
        a(f"s_lshl_b32 s{s_t2}, s{s_w}, 10")
        a(f"s_add_u32 s{s_t2}, s{s_t2}, s{s_xd}")
        self.dma(self.V_XD, R_X, f"s{s_t1}", f"s{s_t2}")
        a(f"s_add_u32 s{s_t1}, s{s_t1}, 65536")
        a(f"s_add_u32 s{s_t2}, s{s_t2}, 8192")
        self.dma(self.V_XD, R_X, f"s{s_t1}", f"s{s_t2}")
        a(f"s_add_u32 s{s_jx}, s{s_jx}, 1")
        self.ring_inc(s_xd, step, lo, hi)

    def stats_ops(self, xf, ch):
        ops = []
        for r in range(4):
            t0, t1 = self.V_T + (r & 1) * 2, self.V_T + (r & 1) * 2 + 1
            ops.append(f"v_and_b32 v{t0}, 0xffff0000, v{xf + r}")
            ops.append(f"v_lshlrev_b32 v{t1}, 16, v{xf + r}")
            if ch == 0:
                ops.append(f"v_add_f32 v{self.V_ST}, v{self.V_ST}, v{t0}")
                ops.append(f"v_add_f32 v{self.V_ST}, v{self.V_ST}, v{t1}")
            else:
                ops.append(f"v_fmac_f32 v{self.V_ST}, v{t0}, v{t0}")
                ops.append(f"v_fmac_f32 v{self.V_ST}, v{t1}, v{t1}")
        return ops

    def kstep(self, U, st, waddr, wimm, xaddr, ch):
        a = self.a
        xf = self.V_XF + 4 * st
        sops = self.stats_ops(xf, ch)
        per = -(-len(sops) // U)
        for u in range(U):
            wf = self.V_WF + (st * 6 + u) * 4
            acc = self.V_ACC + 16 * u
            a(f"{MFMA} {vr(acc, 16)}, {vr(wf, 4)}, {vr(xf, 4)}, {vr(acc, 16)}")
            a(f"ds_read_b64_tr_b16 {vr(wf, 2)}, v{waddr} offset:{wimm(u, 0)}")
            a(f"ds_read_b64_tr_b16 {vr(wf + 2, 2)}, v{waddr} offset:{wimm(u, 1)}")
            for o in sops[u * per:(u + 1) * per]:
                a(o)
        a(f"ds_read_b128 {vr(xf, 4)}, v{xaddr}")

    def kreads(self, U, st, waddr, wimm, xaddr):
        a = self.a
        xf = self.V_XF + 4 * st
        for u in range(U):
            wf = self.V_WF + (st * 6 + u) * 4
            a(f"ds_read_b64_tr_b16 {vr(wf, 2)}, v{waddr} offset:{wimm(u, 0)}")
            a(f"ds_read_b64_tr_b16 {vr(wf + 2, 2)}, v{waddr} offset:{wimm(u, 1)}")
        a(f"ds_read_b128 {vr(xf, 4)}, v{xaddr}")

    def unit_valid(self, b, per_ch, ch_dec):
        a = self.a
        a(f"s_add_u32 s{s_t1}, s{s_tt}, {4 * b}")
        if ch_dec:
            a(f"s_sub_u32 s{s_t2}, {per_ch}, s{s_ch}")
            a(f"s_cmp_lt_u32 s{s_t1}, s{s_t2}")
        else:
            a(f"s_cmp_lt_u32 s{s_t1}, {per_ch}")

    def cs_share(self, nblk, per_ch, ch_dec, vbase, ustride, imm_fn):
        a = self.a
        ones, D = self.V_E, self.V_E + 16
        f0, f1 = self.V_E + 4, self.V_E + 8
        for r in range(4):
            a(f"v_mov_b32 v{ones + r}, 0x3f803f80")
        for b in range(nblk):
            skip = a.newlabel("csskip")
            a(f"v_mov_b32 v{self.V_CS + b}, 0")
            self.unit_valid(b, per_ch, ch_dec)
            a(f"s_cbranch_scc0 {skip}")
            a(f"s_mul_i32 s{s_t2}, s{s_t1}, {ustride}")
            a(f"v_add_u32 v{self.V_T2}, s{s_t2}, v{vbase}")
            for h, f in ((0, f0), (1, f1)):
                a(f"ds_read_b64_tr_b16 {vr(f, 2)}, v{self.V_T2} offset:{imm_fn(h, 0)}")
                a(f"ds_read_b64_tr_b16 {vr(f + 2, 2)}, v{self.V_T2} offset:{imm_fn(h, 1)}")
            a("s_waitcnt lgkmcnt(0)")
            a(f"{MFMA} {vr(D, 16)}, {vr(ones, 4)}, {vr(f0, 4)}, 0")
            a(f"{MFMA} {vr(D, 16)}, {vr(ones, 4)}, {vr(f1, 4)}, {vr(D, 16)}")
            a(f"v_mov_b32 v{self.V_CS + b}, v{D}")
            a.label(skip)

    def cs_publish(self, nblk, per_ch, ch_dec):
        a = self.a
        o = self.V_T2 + 3
        for b in range(nblk):
            skip = a.newlabel("cspub")
            self.unit_valid(b, per_ch, ch_dec)
            a(f"s_cbranch_scc0 {skip}")
            a(f"s_mul_i32 s{s_t2}, s{s_ch}, {per_ch}")
            a(f"s_add_u32 s{s_t1}, s{s_t1}, s{s_t2}")
            a(f"s_lshl_b32 s{s_t1}, s{s_t1}, 7")
            a(f"s_mul_i32 s{s_t2}, s{s_ntile}, {352 * 4}")
            a(f"s_add_u32 s{s_t1}, s{s_t1}, s{s_t2}")
            a(f"s_add_u32 s{s_t1}, s{s_t1}, {WS_Z + Z_CS}")
            a(f"v_lshlrev_b32 v{o}, 2, v{self.V_LANE}")
            a(f"v_add_u32 v{o}, s{s_t1}, v{o}")
            self.exec_low32()
            a(f"buffer_atomic_add_f32 v{self.V_CS + b}, v{o}, {srd(R_WS)}, 0 offen")
            self.exec_restore()
            a.label(skip)

    def p1_events(self, it_flag, it_pub, it_sig, cs_args):
        a = self.a
        l1, l2, l3, ok = (a.newlabel("ev") for _ in range(4))
        a(f"s_cmp_eq_u32 s{s_it}, {it_flag}")
        a(f"s_cbranch_scc0 {l1}")
        a(f"global_load_dword v{self.V_FLAG}, v{self.V_ZERO}, {sp(S_DBG)} sc1")
        a.label(l1)
        a(f"s_cmp_eq_u32 s{s_it}, {it_pub}")
        a(f"s_cbranch_scc0 {l2}")
        a(f"v_readfirstlane_b32 s{s_t0}, v{self.V_FLAG}")
        a(f"s_cmp_ge_u32 s{s_t0}, {N_ZEROERS}")
        a(f"s_cbranch_scc1 {ok}")
        self.spin(f"global_load_dword v{self.V_FLAG}, v{self.V_ZERO}, {sp(S_DBG)} sc1", N_ZEROERS, self.V_FLAG, "ini")
        a.label(ok)
        self.cs_publish(*cs_args)
        a.label(l2)
        a(f"s_cmp_eq_u32 s{s_it}, {it_sig}")
        a(f"s_cbranch_scc0 {l3}")
        self.signal_counter(s_ntile, CNT_CS, self.V_T2 + 3, self.V_T2 + 2)
        a.label(l3)

    def stats_and_correction(self, U, chstride):
        a = self.a
        t, u = self.V_T, self.V_T + 1
        q = self.V_E
        a(f"v_and_b32 v{t}, 31, v{self.V_LANE}")
        a(f"s_lshl_b32 s{s_t0}, s{s_tt}, 5")
        a(f"v_add_u32 v{t}, s{s_t0}, v{t}")
        a(f"v_lshlrev_b32 v{t}, 4, v{t}")
        a(f"v_add_u32 v{t}, {EP_STAT}, v{t}")
        a(f"v_lshrrev_b32 v{u}, 5, v{self.V_LANE}")
        a(f"s_lshl_b32 s{s_t0}, s{s_ch}, 1")
        a(f"v_add_u32 v{u}, s{s_t0}, v{u}")
        a(f"v_lshlrev_b32 v{u}, 2, v{u}")
        a(f"v_add_u32 v{u}, v{t}, v{u}")
        a(f"ds_write_b32 v{u}, v{self.V_ST}")
        a("s_waitcnt lgkmcnt(0)")
        self.wait_counter(s_ntile, CNT_CS, 16, u, self.V_T + 2, "cs")
        cs0 = self.V_E + 8
        a(f"v_and_b32 v{u}, 31, v{self.V_LANE}")
        a(f"v_lshlrev_b32 v{u}, 2, v{u}")
        a(f"s_mul_i32 s{s_t0}, s{s_ntile}, {352 * 4}")
        a(f"s_mul_i32 s{s_t1}, s{s_ch}, {chstride * 128}")
        a(f"s_add_u32 s{s_t0}, s{s_t0}, s{s_t1}")
        a(f"s_add_u32 s{s_t0}, s{s_t0}, {WS_Z + Z_CS}")
        a(f"v_add_u32 v{u}, s{s_t0}, v{u}")
        for k in range(U):
            a(f"buffer_load_dword v{cs0 + k}, v{u}, {srd(R_WS)}, 0 offen offset:{128 * k} sc1")
        self.p2_issue_s1()
        a(f"ds_read_b128 {vr(q, 4)}, v{t}")
        a("s_waitcnt lgkmcnt(0)")
        a(f"v_add_f32 v{q}, v{q}, v{q + 1}")
        a(f"v_add_f32 v{q + 2}, v{q + 2}, v{q + 3}")
        a(f"v_mul_f32 v{q}, 0x3b000000, v{q}")
        a(f"v_mul_f32 v{q + 2}, 0x3b000000, v{q + 2}")
        a(f"v_fma_f32 v{q + 2}, -v{q}, v{q}, v{q + 2}")
        a(f"v_max_f32 v{q + 2}, 0, v{q + 2}")
        a(f"v_add_f32 v{q + 2}, 0x3727c5ac, v{q + 2}")
        a(f"v_rsq_f32 v{self.V_RSTD}, v{q + 2}")
        mb = self.V_MB
        a(f"v_sub_f32 v{q}, 0, v{q}")
        a(f"v_cvt_pk_bf16_f32 v{mb}, v{q}, v{q}")
        a(f"v_and_b32 v{q + 1}, 0xffff0000, v{mb}")
        a(f"v_sub_f32 v{q + 1}, v{q}, v{q + 1}")
        a(f"v_cvt_pk_bf16_f32 v{mb + 1}, v{q + 1}, v{self.V_ZERO}")
        a(f"v_mov_b32 v{mb + 2}, 0")
        a(f"v_mov_b32 v{mb + 3}, 0")
        msk = self.V_T + 2
        a(f"v_cmp_gt_u32 vcc, 32, v{self.V_LANE}")
        a(f"v_cndmask_b32 v{msk}, 0, -1, vcc")
        for ca in (self.V_CA, self.V_E + 4):
            a(f"v_mov_b32 v{ca + 2}, 0")
            a(f"v_mov_b32 v{ca + 3}, 0")
        a(f"s_waitcnt vmcnt({S1N})")
        for k in range(U):
            ca = self.V_CA if k % 2 == 0 else self.V_E + 4
            c = cs0 + k
            a(f"v_cvt_pk_bf16_f32 v{ca}, v{c}, v{c}")
            a(f"v_lshlrev_b32 v{ca + 1}, 16, v{ca}")
            a(f"v_sub_f32 v{ca + 1}, v{c}, v{ca + 1}")
            a(f"v_cvt_pk_bf16_f32 v{ca}, v{c}, v{ca + 1}")
            a(f"v_and_b32 v{ca}, v{msk}, v{ca}")
            a(f"v_and_b32 v{ca + 1}, 0xffff, v{ca}")
            acc = self.V_ACC + 16 * k
            a(f"{MFMA} {vr(acc, 16)}, {vr(ca, 4)}, {vr(mb, 4)}, {vr(acc, 16)}")

    def ffn_dma_w(self):
        a = self.a
        a(f"s_xor_b32 s{s_t1}, s{s_jw}, s{s_mh}")
        a(f"s_lshl_b32 s{s_t2}, s{s_m8}, 1")
        a(f"s_add_u32 s{s_t1}, s{s_t1}, s{s_t2}")
        a(f"s_and_b32 s{s_t1}, s{s_t1}, 15")
        a(f"s_mul_i32 s{s_t1}, s{s_t1}, {32 * 2752}")
        a(f"s_add_u32 s{s_t1}, s{s_t1}, s{s_wso}")
        a(f"s_cmp_ge_u32 s{s_jw}, 16")
        a(f"s_cselect_b32 s{s_t1}, {OOB}, s{s_t1}")
        for k, (r, pw) in enumerate(((R_W0, s_pw0), (R_W1, s_pw1), (R_W2, s_pw2))):
            a(f"s_add_u32 s{s_t2}, s{pw}, s{s_wd}")
            if k == 2:
                a(f"s_cmp_ge_u32 s{s_w}, 6")
                a(f"s_cselect_b32 s{s_t2}, {F_DUMMY}, s{s_t2}")
            self.dma(self.V_WD + k, r, f"s{s_t1}", f"s{s_t2}")
        a(f"s_add_u32 s{s_jw}, s{s_jw}, 1")
        self.ring_inc(s_wd, F_WSLOT, 0, F_NW * F_WSLOT)

    def ffn(self):
        a = self.a
        a(f"s_lshl_b32 s{s_t0}, s{s_nq}, 1")
        a(f"s_add_u32 s{s_t0}, s{s_t0}, s{s_nt}")
        a(f"s_sub_u32 s{s_t0}, s{s_t0}, 2")
        a(f"s_add_u32 s{s_ntile}, s{s_t0}, 8")
        a(f"s_mul_i32 s{s_su}, s{s_t0}, 11")
        a(f"s_sub_i32 s{s_t1}, s{s_t0}, 5")
        a(f"s_max_i32 s{s_t1}, s{s_t1}, 0")
        a(f"s_sub_u32 s{s_su}, s{s_su}, s{s_t1}")
        WSZ = 512 * 2752
        self.mk_srd(R_W0, S_WG, WSZ)
        self.mk_srd(R_W2, S_WU, WSZ)
        a(f"s_cmp_le_u32 s{s_w}, 2")
        a(f"s_cselect_b32 s{R_W1}, s{S_WG}, s{S_WU}")
        a(f"s_cselect_b32 s{R_W1 + 1}, s{S_WG + 1}, s{S_WU + 1}")
        a(f"s_and_b32 s{R_W1 + 1}, s{R_W1 + 1}, 0xffff")
        a(f"s_mov_b32 s{R_W1 + 2}, {WSZ}")
        a(f"s_mov_b32 s{R_W1 + 3}, 0x20000")
        a(f"s_add_u32 s{s_t4}, s{s_w}, 8")
        a(f"s_sub_u32 s{s_t2}, s{s_w}, 3")
        a(f"s_cmp_le_u32 s{s_w}, 2")
        a(f"s_cselect_b32 s{s_t4}, s{s_t4}, s{s_t2}")
        a(f"s_cselect_b32 s{s_t3}, 0, {F_UPOFF}")
        a(f"s_lshl_b32 s{s_pw0}, s{s_w}, 10")
        a(f"s_lshl_b32 s{s_pw1}, s{s_t4}, 10")
        a(f"s_add_u32 s{s_pw1}, s{s_pw1}, s{s_t3}")
        a(f"s_add_u32 s{s_t5}, s{s_w}, 5")
        a(f"s_lshl_b32 s{s_pw2}, s{s_t5}, 10")
        a(f"s_add_u32 s{s_pw2}, s{s_pw2}, {F_UPOFF}")
        a(f"s_mov_b32 s{s_t2}, 2979")
        a(f"s_mov_b32 s{s_t3}, 2752")
        for k, spl in enumerate((s_w, s_t4, s_t5)):
            g, row, c = self.V_T, self.V_T + 1, self.V_T + 2
            a(f"s_lshl_b32 s{s_t0}, s{spl}, 6")
            a(f"v_add_u32 v{g}, s{s_t0}, v{self.V_LANE}")
            a(f"v_mul_u32_u24 v{row}, s{s_t2}, v{g}")
            a(f"v_lshrrev_b32 v{row}, 16, v{row}")
            a(f"v_mul_u32_u24 v{c}, 22, v{row}")
            a(f"v_sub_u32 v{c}, v{g}, v{c}")
            a(f"v_lshlrev_b32 v{c}, 4, v{c}")
            a(f"v_mul_u32_u24 v{row}, s{s_t3}, v{row}")
            a(f"v_add_u32 v{self.V_WD + k}, v{row}, v{c}")
        a(f"s_cmp_ge_u32 s{s_w}, 6")
        a(f"s_cselect_b32 s{s_t0}, {OOB}, 0")
        a(f"v_or_b32 v{self.V_WD + 2}, s{s_t0}, v{self.V_WD + 2}")
        a(f"s_lshl_b32 s{s_wso}, s{s_su}, 5")
        a(f"s_mov_b32 s{s_jx}, 0")
        a(f"s_mov_b32 s{s_jw}, 0")
        a(f"s_mov_b32 s{s_xd}, {F_XBASE}")
        a(f"s_mov_b32 s{s_wd}, 0")
        dx = lambda: self.dma_x(F_XBASE, F_XBASE + F_NX * XSLOT, XSLOT)
        dx(); self.ffn_dma_w(); self.ffn_dma_w()
        dx(); self.ffn_dma_w(); self.ffn_dma_w()
        self.xfrag_addrs(F_XBASE, True)
        t, u, w = self.V_T, self.V_T + 1, self.V_T + 2
        a(f"v_lshrrev_b32 v{t}, 4, v{self.V_LANE}")
        a(f"v_and_b32 v{u}, 1, v{t}")
        a(f"v_mul_u32_u24 v{u}, {F_UPOFF}, v{u}")
        a(f"v_lshrrev_b32 v{t}, 1, v{t}")
        a(f"v_lshlrev_b32 v{t}, 3, v{t}")
        a(f"v_bfe_u32 v{w}, v{self.V_LANE}, 2, 2")
        a(f"v_add_u32 v{t}, v{t}, v{w}")
        a(f"v_mul_u32_u24 v{t}, 352, v{t}")
        a(f"v_add_u32 v{u}, v{u}, v{t}")
        a(f"v_and_b32 v{w}, 3, v{self.V_LANE}")
        a(f"v_lshlrev_b32 v{w}, 3, v{w}")
        a(f"v_add_u32 v{u}, v{u}, v{w}")
        a(f"s_mul_i32 s{s_t0}, s{s_ch}, {6 * 32}")
        a(f"v_add_u32 v{self.V_WB}, s{s_t0}, v{u}")
        for r in range(96):
            a(f"v_mov_b32 v{self.V_ACC + r}, 0")
        a(f"v_mov_b32 v{self.V_ST}, 0")
        a("s_waitcnt vmcnt(11)")
        a("s_barrier")
        self.stamp(1)
        wimm = lambda kk: (lambda u, s: kk * 16 * 352 + s * 4 * 352 + u * 32)
        cs_args = (2, 6, True)
        self.cs_share(2, 6, True, self.V_WB, 32, lambda h, s: h * 16 * 352 + s * 4 * 352)

        for ch, U in ((0, 6), (1, 5)):
            if ch == 0:
                a(f"s_cmp_eq_u32 s{s_ch}, 1")
                a("s_cbranch_scc1 L_ffn_c1")
            else:
                a.label("L_ffn_c1")
            self.kreads(U, 0, self.V_WB, wimm(0), self.V_XA + 0)
            self.kreads(U, 1, self.V_WB, wimm(1), self.V_XA + 1)
            a(f"s_mov_b32 s{s_it}, 0")
            a(f"s_mov_b32 s{s_xr0}, 0")
            a(f"s_mov_b32 s{s_xr1}, {XSLOT}")
            a(f"s_mov_b32 s{s_wr0}, {F_WSLOT}")
            a(f"s_mov_b32 s{s_wr1}, {2 * F_WSLOT}")
            L = f"L_ffn_loop{ch}"
            a.label(L)
            a(f"v_add_u32 v{self.V_XR + 0}, s{s_xr0}, v{self.V_XA + 2}")
            a(f"v_add_u32 v{self.V_XR + 1}, s{s_xr0}, v{self.V_XA + 3}")
            a(f"v_add_u32 v{self.V_XR + 2}, s{s_xr1}, v{self.V_XA + 0}")
            a(f"v_add_u32 v{self.V_XR + 3}, s{s_xr1}, v{self.V_XA + 1}")
            a(f"v_add_u32 v{self.V_WR + 0}, s{s_wr0}, v{self.V_WB}")
            a(f"v_add_u32 v{self.V_WR + 1}, s{s_wr1}, v{self.V_WB}")
            nrd = 2 * U + 1
            for p in range(4):
                if p in (0, 2):
                    a(f"s_waitcnt vmcnt(8) lgkmcnt({nrd})")
                    a("s_barrier")
                else:
                    a(f"s_waitcnt lgkmcnt({nrd})")
                self.kstep(U, p & 1, self.V_WR + (p >> 1), wimm(p & 1), self.V_XR + p, ch)
                if p == 0:
                    self.p1_events(2, 3, 4, cs_args)
                    dx(); self.ffn_dma_w()
                elif p == 2:
                    self.ffn_dma_w()
            a(f"s_mov_b32 s{s_xr0}, s{s_xr1}")
            self.ring_inc(s_xr1, XSLOT, 0, F_NX * XSLOT)
            self.ring_inc(s_wr0, 2 * F_WSLOT, 0, F_NW * F_WSLOT)
            self.ring_inc(s_wr1, 2 * F_WSLOT, 0, F_NW * F_WSLOT)
            a(f"s_add_u32 s{s_it}, s{s_it}, 1")
            a(f"s_cmp_lt_u32 s{s_it}, 8")
            a(f"s_cbranch_scc1 {L}")
            if ch == 0:
                a("s_branch L_ffn_post")
        a.label("L_ffn_post")
        a("s_waitcnt vmcnt(0) lgkmcnt(0)")
        a("s_barrier")
        self.stamp(2)
        self.stats_and_correction(6, 6)
        r2 = self.V_T2
        a(f"v_mul_f32 v{r2}, v{self.V_RSTD}, v{self.V_RSTD}")
        o = self.V_T
        a(f"s_lshl_b32 s{s_t0}, s{s_m}, 2")
        a(f"s_add_u32 s{s_t0}, s{s_t0}, s{s_tt}")
        a(f"s_mul_i32 s{s_t0}, s{s_t0}, 86")
        a(f"s_add_u32 s{s_t0}, s{s_t0}, s{s_su}")
        a(f"s_mul_i32 s{s_t1}, s{s_ch}, 6")
        a(f"s_add_u32 s{s_t0}, s{s_t0}, s{s_t1}")
        a(f"s_lshl_b32 s{s_t0}, s{s_t0}, 10")
        a(f"s_add_u32 s{s_t4}, s{s_t0}, {WS_H}")
        a(f"v_lshlrev_b32 v{o}, 4, v{self.V_LANE}")
        a(f"v_mov_b32 v{r2 + 1}, v{r2}")
        for u in range(6):
            if u == 5:
                a(f"s_cmp_eq_u32 s{s_ch}, 1")
                a("s_cbranch_scc1 L_ffn_st_done")
            acc = self.V_ACC + 16 * u
            pk = self.V_E + 4 * (u & 1)
            for r in range(8):
                a(f"v_max_f32 v{acc + r}, 0, v{acc + r}")
            for r in range(0, 8, 2):
                a(f"v_pk_mul_f32 {vr(acc + r, 2)}, {vr(acc + r, 2)}, {vr(acc + 8 + r, 2)}")
            for r in range(0, 8, 2):
                a(f"v_pk_mul_f32 {vr(acc + r, 2)}, {vr(acc + r, 2)}, {vr(r2, 2)}")
            for r in range(4):
                a(f"v_cvt_pk_bf16_f32 v{pk + r}, v{acc + 2 * r}, v{acc + 2 * r + 1}")
            a(f"s_add_u32 s{s_t5}, s{s_t4}, {1024 * u}")
            a(f"buffer_store_dwordx4 {vr(pk, 4)}, v{o}, {srd(R_WS)}, s{s_t5} offen sc1")
        a.label("L_ffn_st_done")
        a("s_waitcnt vmcnt(0)")
        a("s_barrier")
        self.signal_counter(s_m, CNT_H, self.V_T2 + 3, self.V_T2 + 2)
        self.stamp(3)
        a("s_branch L_phase2")

    V_PHI_W = 176
    V_P = 192
    V_PQ = 208
    V_PK = 224
    V_C = 232
    V_SM = 233
    V_BF = 240
    V_AD = 244

    def att_dma_w(self):
        a = self.a
        a(f"s_add_u32 s{s_t1}, s{s_jw}, s{s_m8}")
        a(f"s_and_b32 s{s_t1}, s{s_t1}, 7")
        a(f"s_mul_i32 s{s_t1}, s{s_t1}, {64 * 3072}")
        a(f"s_add_u32 s{s_t1}, s{s_t1}, s{s_wso}")
        a(f"s_cmp_ge_u32 s{s_jw}, 8")
        a(f"s_cselect_b32 s{s_t1}, {OOB}, s{s_t1}")
        a(f"s_lshl_b32 s{s_t2}, s{s_w}, 10")
        a(f"s_add_u32 s{s_t2}, s{s_t2}, s{s_wd}")
        for part, coff in enumerate((1024, 2048, 0)):
            a(f"s_add_u32 s{s_t3}, s{s_t1}, {coff}")
            a(f"s_add_u32 s{s_t4}, s{s_t2}, {16384 + part * 8192}")
            self.dma(self.V_WD, R_W0, f"s{s_t3}", f"s{s_t4}")
        a(f"s_add_u32 s{s_jw}, s{s_jw}, 1")
        self.ring_inc(s_wd, A_SLOT, 0, A_NS * A_SLOT)

    def softmax(self, P, out):
        a = self.a
        m0, m1, t = self.V_SM, self.V_SM + 1, self.V_SM + 2
        c = self.V_C
        for base, m in ((P, m0), (P + 8, m1)):
            a(f"v_max3_f32 v{m}, v{base}, v{base + 1}, v{base + 2}")
            a(f"v_max3_f32 v{m}, v{m}, v{base + 3}, v{base + 4}")
            a(f"v_max3_f32 v{m}, v{m}, v{base + 5}, v{base + 6}")
            a(f"v_max_f32 v{m}, v{m}, v{base + 7}")
        a(f"v_permlane32_swap_b32 v{m0}, v{m1}")
        a(f"v_max_f32 v{m0}, v{m0}, v{m1}")
        a(f"v_mul_f32 v{m0}, v{m0}, v{c}")
        a(f"v_mov_b32 v{m1}, v{m0}")
        a(f"v_permlane32_swap_b32 v{m0}, v{m1}")
        for i in range(16):
            m = m0 if i < 8 else m1
            a(f"v_fma_f32 v{P + i}, v{P + i}, v{c}, -v{m}")
        for i in range(16):
            a(f"v_exp_f32 v{P + i}, v{P + i}")
        for base, m in ((P, m0), (P + 8, m1)):
            a(f"v_add_f32 v{m}, v{base}, v{base + 1}")
            a(f"v_add_f32 v{t}, v{base + 2}, v{base + 3}")
            a(f"v_add_f32 v{m}, v{m}, v{base + 4}")
            a(f"v_add_f32 v{t}, v{t}, v{base + 5}")
            a(f"v_add_f32 v{m}, v{m}, v{base + 6}")
            a(f"v_add_f32 v{t}, v{t}, v{base + 7}")
            a(f"v_add_f32 v{m}, v{m}, v{t}")
        a(f"v_permlane32_swap_b32 v{m0}, v{m1}")
        a(f"v_add_f32 v{m0}, v{m0}, v{m1}")
        a(f"v_rcp_f32 v{m0}, v{m0}")
        a(f"v_mov_b32 v{m1}, v{m0}")
        a(f"v_permlane32_swap_b32 v{m0}, v{m1}")
        for i in range(16):
            m = m0 if i < 8 else m1
            a(f"v_mul_f32 v{P + i}, v{P + i}, v{m}")
        for i in range(8):
            a(f"v_cvt_pk_bf16_f32 v{out + i}, v{P + 2 * i}, v{P + 2 * i + 1}")

    def feature(self, src, head, out):
        a = self.a
        bf = self.V_BF
        for r in range(4):
            a(f"v_cvt_pk_bf16_f32 v{bf + r}, v{src + 2 * r}, v{src + 2 * r + 1}")
        a(f"{MFMA} {vr(self.V_P, 16)}, {vr(self.V_PHI_W + 4 * head, 4)}, {vr(bf, 4)}, 0")
        self.softmax(self.V_P, out)

    def att(self):
        a = self.a
        a(f"s_lshl_b32 s{s_g}, s{s_nq}, 1")
        a(f"s_add_u32 s{s_g}, s{s_g}, s{s_nt}")
        a(f"s_mov_b32 s{s_ntile}, s{s_g}")
        self.mk_srd(R_W0, S_WQKV, 512 * 3072)
        self.mk_srd(R_W1, S_WPHI, 32 * 512)
        t, u, w = self.V_T, self.V_T + 1, self.V_T + 2
        raw = self.V_E
        a(f"v_lshrrev_b32 v{t}, 5, v{self.V_LANE}")
        a(f"v_lshlrev_b32 v{t}, 7, v{t}")
        a(f"v_and_b32 v{u}, 15, v{self.V_LANE}")
        a(f"v_lshlrev_b32 v{u}, 1, v{u}")
        a(f"v_add_u32 v{t}, v{t}, v{u}")
        a(f"s_lshl_b32 s{s_t0}, s{s_g}, 2")
        a(f"s_lshl_b32 s{s_t1}, s{s_ch}, 1")
        a(f"s_add_u32 s{s_t0}, s{s_t0}, s{s_t1}")
        a(f"s_lshl_b32 s{s_t0}, s{s_t0}, 9")
        for hd in range(2):
            for j in range(8):
                a(f"buffer_load_ushort v{raw + 8 * hd + j}, v{t}, {srd(R_W1)}, s{s_t0} offen offset:{hd * 512 + (j % 4) * 32 + (j // 4) * 256}")
        a(f"v_lshrrev_b32 v{t}, 3, v{self.V_LANE}")
        a(f"s_lshl_b32 s{s_t0}, s{s_w}, 3")
        a(f"v_add_u32 v{t}, s{s_t0}, v{t}")
        a(f"v_bfe_u32 v{u}, v{t}, 1, 1")
        a(f"v_lshlrev_b32 v{u}, 2, v{u}")
        a(f"v_and_b32 v{w}, 7, v{self.V_LANE}")
        a(f"v_xor_b32 v{u}, v{u}, v{w}")
        a(f"v_lshlrev_b32 v{u}, 4, v{u}")
        a(f"s_mov_b32 s{s_t0}, 3072")
        a(f"v_mul_u32_u24 v{t}, s{s_t0}, v{t}")
        a(f"v_add_u32 v{self.V_WD}, v{t}, v{u}")
        a(f"s_lshl_b32 s{s_wso}, s{s_g}, 7")
        a(f"s_mov_b32 s{s_jx}, 0")
        a(f"s_mov_b32 s{s_jw}, 0")
        a(f"s_mov_b32 s{s_xd}, 0")
        a(f"s_mov_b32 s{s_wd}, 0")
        dx = lambda: self.dma_x(0, A_NS * A_SLOT, A_SLOT)
        for _ in range(3):
            dx(); self.att_dma_w()
        self.xfrag_addrs(0, False)
        a(f"v_lshrrev_b32 v{t}, 5, v{self.V_LANE}")
        a(f"v_lshlrev_b32 v{t}, 3, v{t}")
        a(f"v_bfe_u32 v{w}, v{self.V_LANE}, 2, 2")
        a(f"v_add_u32 v{t}, v{t}, v{w}")
        a(f"v_lshlrev_b32 v{t}, 7, v{t}")
        a(f"v_lshrrev_b32 v{w}, 1, v{w}")
        a(f"v_xor_b32 v{w}, s{s_ch}, v{w}")
        a(f"v_lshlrev_b32 v{w}, 6, v{w}")
        a(f"v_add_u32 v{t}, v{t}, v{w}")
        a(f"v_bfe_u32 v{w}, v{self.V_LANE}, 4, 1")
        a(f"v_lshlrev_b32 v{w}, 5, v{w}")
        a(f"v_add_u32 v{t}, v{t}, v{w}")
        a(f"v_and_b32 v{w}, 3, v{self.V_LANE}")
        a(f"v_lshlrev_b32 v{w}, 3, v{w}")
        a(f"v_add_u32 v{t}, v{t}, v{w}")
        a(f"v_add_u32 v{self.V_WB}, 16384, v{t}")
        for r in range(48):
            a(f"v_mov_b32 v{self.V_ACC + r}, 0")
        a(f"v_mov_b32 v{self.V_ST}, 0")
        a("s_waitcnt vmcnt(10)")
        a("s_barrier")
        self.stamp(1)
        zk = a.newlabel("zsig")
        a(f"s_cmp_lt_u32 s2, {N_ZEROERS}")
        a(f"s_cbranch_scc0 {zk}")
        a(f"s_cmp_eq_u32 s{s_w}, 0")
        a(f"s_cbranch_scc0 {zk}")
        a(f"v_mov_b32 v{t}, 1")
        self.exec_one()
        a(f"global_atomic_add v{self.V_ZERO}, v{t}, {sp(S_DBG)}")
        self.exec_restore()
        a.label(zk)
        a(f"v_bfe_u32 v{w}, v{self.V_LANE}, 4, 1")
        a(f"s_mov_b32 s{s_t0}, 0x80008000")
        a(f"v_mul_lo_u32 v{w}, s{s_t0}, v{w}")
        for hd in range(2):
            for r in range(4):
                d = self.V_PHI_W + 4 * hd + r
                a(f"v_lshl_or_b32 v{d}, v{raw + 8 * hd + 2 * r + 1}, 16, v{raw + 8 * hd + 2 * r}")
                a(f"v_xor_b32 v{d}, v{w}, v{d}")
        wimm = lambda pp: (lambda u, s: u * 8192 + pp * 2048 + s * 512)
        cs_args = (1, 3, False)
        a(f"s_lshl_b32 s{s_t0}, s{s_mh}, 12")
        a(f"v_add_u32 v{self.V_T2 + 1}, s{s_t0}, v{self.V_WB}")
        self.cs_share(1, 3, False, self.V_T2 + 1, 8192, lambda h, s: h * 2048 + s * 512)

        U = 3
        for ch in (0, 1):
            if ch == 0:
                a(f"s_cmp_eq_u32 s{s_ch}, 1")
                a("s_cbranch_scc1 L_att_c1")
            else:
                a.label("L_att_c1")
            self.kreads(U, 0, self.V_WB, wimm(0), self.V_XA + 0)
            self.kreads(U, 1, self.V_WB, wimm(1), self.V_XA + 1)
            a(f"s_mov_b32 s{s_it}, 0")
            a(f"s_mov_b32 s{s_xr0}, 0")
            a(f"s_mov_b32 s{s_xr1}, {A_SLOT}")
            L = f"L_att_loop{ch}"
            a.label(L)
            a(f"v_add_u32 v{self.V_XR + 0}, s{s_xr0}, v{self.V_XA + 2}")
            a(f"v_add_u32 v{self.V_XR + 1}, s{s_xr0}, v{self.V_XA + 3}")
            a(f"v_add_u32 v{self.V_XR + 2}, s{s_xr1}, v{self.V_XA + 0}")
            a(f"v_add_u32 v{self.V_XR + 3}, s{s_xr1}, v{self.V_XA + 1}")
            a(f"v_add_u32 v{self.V_WR + 0}, s{s_xr0}, v{self.V_WB}")
            a(f"v_add_u32 v{self.V_WR + 1}, s{s_xr1}, v{self.V_WB}")
            nrd = 2 * U + 1
            for p in range(4):
                if p == 2:
                    a(f"s_waitcnt vmcnt(5) lgkmcnt({nrd})")
                    a("s_barrier")
                else:
                    a(f"s_waitcnt lgkmcnt({nrd})")
                self.kstep(U, p & 1, self.V_WR + (p >> 1), wimm((p + 2) & 3), self.V_XR + p, ch)
                if p == 2:
                    self.p1_events(2, 3, 4, cs_args)
                    dx(); self.att_dma_w()
            a(f"s_mov_b32 s{s_xr0}, s{s_xr1}")
            self.ring_inc(s_xr1, A_SLOT, 0, A_NS * A_SLOT)
            a(f"s_add_u32 s{s_it}, s{s_it}, 1")
            a(f"s_cmp_lt_u32 s{s_it}, 8")
            a(f"s_cbranch_scc1 {L}")
            if ch == 0:
                a("s_branch L_att_post")
        a.label("L_att_post")
        a("s_waitcnt vmcnt(0) lgkmcnt(0)")
        a("s_barrier")
        self.stamp(2)
        ok = a.newlabel("ones")
        a(f"s_cmp_eq_u32 s{s_w}, 1")
        a(f"s_cbranch_scc0 {ok}")
        a(f"v_mov_b32 v{t}, 0x3f803f80")
        a(f"v_lshlrev_b32 v{u}, 2, v{self.V_LANE}")
        a(f"v_and_b32 v{u}, 127, v{u}")
        a(f"v_add_u32 v{u}, {EP_ONES}, v{u}")
        a(f"ds_write_b32 v{u}, v{t}")
        a.label(ok)
        self.stats_and_correction(3, 3)
        K, V, Q = self.V_ACC, self.V_ACC + 16, self.V_ACC + 32
        a(f"v_mul_f32 v{self.V_C}, 0x3fb8aa3b, v{self.V_RSTD}")
        ad = self.V_AD
        a(f"v_and_b32 v{t}, 31, v{self.V_LANE}")
        a(f"s_lshl_b32 s{s_t0}, s{s_tt}, 5")
        a(f"v_add_u32 v{t}, s{s_t0}, v{t}")
        a(f"v_lshrrev_b32 v{u}, 5, v{self.V_LANE}")
        a(f"v_bfe_u32 v{w}, v{t}, 1, 3")
        a(f"v_xor_b32 v{w}, v{w}, v{u}")
        a(f"v_lshlrev_b32 v{w}, 3, v{w}")
        a(f"v_lshlrev_b32 v{ad}, 6, v{t}")
        a(f"v_add_u32 v{ad}, v{ad}, v{w}")
        a(f"s_lshl_b32 s{s_t0}, s{s_ch}, 14")
        a(f"s_add_u32 s{s_t0}, s{s_t0}, {EP_PHI}")
        a(f"v_add_u32 v{ad}, s{s_t0}, v{ad}")
        for q in range(1, 4):
            a(f"v_xor_b32 v{ad + q}, {16 * q}, v{ad}")
        a(f"v_bfe_u32 v{w}, v{t}, 2, 2")
        a(f"v_xor_b32 v{w}, v{w}, v{u}")
        a(f"v_lshlrev_b32 v{w}, 3, v{w}")
        a(f"v_lshlrev_b32 v{ad + 4}, 5, v{t}")
        a(f"v_add_u32 v{ad + 4}, v{ad + 4}, v{w}")
        a(f"s_lshl_b32 s{s_t0}, s{s_ch}, 13")
        a(f"s_add_u32 s{s_t0}, s{s_t0}, {EP_V}")
        a(f"v_add_u32 v{ad + 4}, s{s_t0}, v{ad + 4}")
        a(f"v_xor_b32 v{ad + 5}, 16, v{ad + 4}")
        for hd in range(2):
            self.feature(K + 8 * hd, hd, self.V_PK)
            for q in range(4):
                a(f"ds_write_b64 v{ad + q}, {vr(self.V_PK + 2 * q, 2)} offset:{hd * 8192}")
        for r in range(16):
            a(f"v_mul_f32 v{V + r}, v{V + r}, v{self.V_RSTD}")
        for hd in range(2):
            for r in range(4):
                a(f"v_cvt_pk_bf16_f32 v{self.V_PK + 4 * hd + r}, v{V + 8 * hd + 2 * r}, v{V + 8 * hd + 2 * r + 1}")
        for hd in range(2):
            for q in range(2):
                a(f"ds_write_b64 v{ad + 4 + q}, {vr(self.V_PK + 4 * hd + 2 * q, 2)} offset:{hd * 4096}")
        a("s_waitcnt lgkmcnt(0)")
        a("s_barrier")
        self.stamp(4)
        nokv = a.newlabel("nokv")
        a(f"s_cmp_eq_u32 s{s_ch}, 0")
        a(f"s_cbranch_scc0 {nokv}")
        D = self.V_ACC + 48
        fa, fb = self.V_ACC + 64, self.V_ACC + 72
        g4, r_, c_ = t, u, w
        a(f"v_lshrrev_b32 v{ad}, 5, v{self.V_LANE}")
        a(f"v_bfe_u32 v{ad + 1}, v{self.V_LANE}, 2, 2")
        a(f"v_bfe_u32 v{ad + 2}, v{self.V_LANE}, 4, 1")
        a(f"v_and_b32 v{ad + 3}, 3, v{self.V_LANE}")
        a(f"v_lshlrev_b32 v{t}, 3, v{ad}")
        a(f"v_add_u32 v{t}, v{t}, v{ad + 1}")
        a(f"v_lshlrev_b32 v{u}, 2, v{ad + 2}")
        a(f"v_add_u32 v{u}, v{u}, v{ad + 3}")
        a(f"v_bfe_u32 v{w}, v{t}, 1, 3")
        a(f"v_xor_b32 v{u}, v{u}, v{w}")
        a(f"v_lshlrev_b32 v{u}, 3, v{u}")
        a(f"v_lshlrev_b32 v{w}, 6, v{t}")
        a(f"v_add_u32 v{u}, v{u}, v{w}")
        a(f"s_lshl_b32 s{s_t0}, s{s_tt}, 13")
        a(f"s_add_u32 s{s_t0}, s{s_t0}, {EP_PHI}")
        pb0, pb1 = ad + 4, ad + 5
        a(f"v_add_u32 v{pb0}, s{s_t0}, v{u}")
        a(f"v_xor_b32 v{pb1}, 16, v{pb0}")
        a(f"v_add_u32 v{pb1}, 256, v{pb1}")
        a(f"v_bfe_u32 v{w}, v{t}, 2, 2")
        a(f"v_xor_b32 v{w}, v{w}, v{ad + 3}")
        a(f"v_lshlrev_b32 v{w}, 3, v{w}")
        a(f"v_lshlrev_b32 v{u}, 5, v{t}")
        a(f"v_add_u32 v{u}, v{u}, v{w}")
        a(f"s_lshl_b32 s{s_t0}, s{s_tt}, 12")
        a(f"s_add_u32 s{s_t0}, s{s_t0}, {EP_V}")
        va0, va1, vstep = ad + 6, ad + 7, self.V_SM
        a(f"v_add_u32 v{va0}, s{s_t0}, v{u}")
        a(f"v_xor_b32 v{va1}, 8, v{va0}")
        a(f"v_add_u32 v{va1}, 128, v{va1}")
        a(f"v_and_b32 v{u}, 15, v{self.V_LANE}")
        a(f"v_lshlrev_b32 v{u}, 3, v{u}")
        a(f"v_add_u32 v{u}, {EP_ONES}, v{u}")
        a(f"v_cmp_eq_u32 vcc, 1, v{ad + 2}")
        a(f"v_cndmask_b32 v{va0}, v{va0}, v{u}, vcc")
        a(f"v_cndmask_b32 v{va1}, v{va1}, v{u}, vcc")
        a(f"v_mov_b32 v{w}, 512")
        a(f"v_cndmask_b32 v{vstep}, v{w}, v{self.V_ZERO}, vcc")
        for mstep in range(8):
            f = fa if mstep % 2 == 0 else fb
            a(f"ds_read_b64_tr_b16 {vr(f, 2)}, v{va0}")
            a(f"ds_read_b64_tr_b16 {vr(f + 2, 2)}, v{va1}")
            a(f"ds_read_b64_tr_b16 {vr(f + 4, 2)}, v{pb0} offset:{mstep * 1024}")
            a(f"ds_read_b64_tr_b16 {vr(f + 6, 2)}, v{pb1} offset:{mstep * 1024}")
            if mstep < 7:
                a(f"v_add_u32 v{va0}, v{va0}, v{vstep}")
                a(f"v_add_u32 v{va1}, v{va1}, v{vstep}")
            a("s_waitcnt lgkmcnt(0)")
            a(f"{MFMA} {vr(D, 16)}, {vr(f, 4)}, {vr(f + 4, 4)}, {'0' if mstep == 0 else vr(D, 16)}")
        a(f"s_lshl_b32 s{s_t0}, s{s_g}, 2")
        a(f"s_add_u32 s{s_t0}, s{s_t0}, s{s_tt}")
        a(f"s_mul_i32 s{s_t0}, s{s_t0}, 2176")
        a(f"s_add_u32 s{s_t0}, s{s_t0}, {WS_Z + Z_KV}")
        a(f"v_and_b32 v{u}, 31, v{self.V_LANE}")
        a(f"v_lshlrev_b32 v{u}, 2, v{u}")
        a(f"v_lshrrev_b32 v{w}, 5, v{self.V_LANE}")
        a(f"v_lshlrev_b32 v{w}, 9, v{w}")
        a(f"v_add_u32 v{w}, v{w}, v{u}")
        for r in range(8):
            a(f"buffer_atomic_add_f32 v{D + r}, v{w}, {srd(R_WS)}, s{s_t0} offen offset:{((r % 4) + 8 * (r // 4)) * 128}")
        self.exec_low32()
        a(f"buffer_atomic_add_f32 v{D + 8}, v{u}, {srd(R_WS)}, s{s_t0} offen offset:2048")
        self.exec_restore()
        a.label(nokv)
        for hd in range(2):
            self.feature(Q + 8 * hd, hd, self.V_PQ + 8 * hd)
        a("s_waitcnt vmcnt(0)")
        a("s_barrier")
        self.signal_counter(s_g, CNT_KV, self.V_T2 + 3, self.V_T2 + 2)
        self.stamp(5)
        self.wait_counter(s_g, CNT_KV, 16, self.V_T2 + 3, self.V_T2 + 2, "kv")
        self.stamp(6)
        raw = self.V_ACC
        a(f"v_and_b32 v{t}, 31, v{self.V_LANE}")
        a(f"v_min_u32 v{t}, 16, v{t}")
        a(f"v_lshlrev_b32 v{t}, 7, v{t}")
        a(f"v_lshrrev_b32 v{u}, 5, v{self.V_LANE}")
        a(f"v_lshlrev_b32 v{u}, 4, v{u}")
        a(f"v_add_u32 v{t}, v{t}, v{u}")
        a(f"s_lshl_b32 s{s_t0}, s{s_g}, 2")
        a(f"s_lshl_b32 s{s_t1}, s{s_ch}, 1")
        a(f"s_add_u32 s{s_t4}, s{s_t0}, s{s_t1}")
        a(f"s_mul_i32 s{s_t0}, s{s_t4}, 2176")
        a(f"s_add_u32 s{s_t0}, s{s_t0}, {WS_Z + Z_KV}")
        for hd in range(2):
            for q in range(4):
                a(f"buffer_load_dwordx4 {vr(raw + 16 * hd + 4 * q, 4)}, v{t}, {srd(R_WS)}, s{s_t0} offen offset:{hd * 2176 + 32 * q} sc1")
        a(f"s_lshl_b32 s{s_t0}, s{s_m}, 2")
        a(f"s_add_u32 s{s_t0}, s{s_t0}, s{s_tt}")
        a(f"s_lshl_b32 s{s_t0}, s{s_t0}, 5")
        a(f"s_add_u32 s{s_t0}, s{s_t0}, s{s_t4}")
        a(f"s_lshl_b32 s{s_t0}, s{s_t0}, 10")
        a(f"s_add_u32 s{s_t4}, s{s_t0}, {WS_O}")
        a(f"v_lshlrev_b32 v{u}, 4, v{self.V_LANE}")
        a("s_waitcnt vmcnt(0)")
        for hd in range(2):
            af = self.V_ACC + 32 + 8 * hd
            for i in range(8):
                a(f"v_cvt_pk_bf16_f32 v{af + i}, v{raw + 16 * hd + 2 * i}, v{raw + 16 * hd + 2 * i + 1}")
            D = self.V_P
            a(f"{MFMA} {vr(D, 16)}, {vr(af, 4)}, {vr(self.V_PQ + 8 * hd, 4)}, 0")
            a(f"{MFMA} {vr(D, 16)}, {vr(af + 4, 4)}, {vr(self.V_PQ + 8 * hd + 4, 4)}, {vr(D, 16)}")
            a(f"v_add_f32 v{D + 8}, 0x358637bd, v{D + 8}")
            a(f"v_rcp_f32 v{D + 8}, v{D + 8}")
            for r in range(8):
                a(f"v_mul_f32 v{D + r}, v{D + r}, v{D + 8}")
            pk = self.V_PK + 4 * hd
            for r in range(4):
                a(f"v_cvt_pk_bf16_f32 v{pk + r}, v{D + 2 * r}, v{D + 2 * r + 1}")
            a(f"s_add_u32 s{s_t5}, s{s_t4}, {1024 * hd}")
            a(f"buffer_store_dwordx4 {vr(pk, 4)}, v{u}, {srd(R_WS)}, s{s_t5} offen sc1")
        a("s_waitcnt vmcnt(0)")
        a("s_barrier")
        self.signal_counter(s_m, CNT_O, self.V_T2 + 3, self.V_T2 + 2)
        self.stamp(3)
        a("s_branch L_phase2")

    P_ACC = 32
    P_W1 = 64
    P_H = 168
    P_WB = 200
    P_X = 216
    P_AD = 220
    HD = 8

    def p2_setup_dma(self):
        a = self.a
        self.mk_srd(R_WD, S_WD, 1376 * 1024)
        self.mk_srd(R_WO, S_WO, 512 * 1024)
        t, u, w = self.V_T2, self.V_T2 + 1, self.V_T2 + 2
        a(f"v_lshrrev_b32 v{t}, 3, v{self.V_LANE}")
        a(f"s_lshl_b32 s{s_t0}, s{s_ch}, 3")
        a(f"v_add_u32 v{t}, s{s_t0}, v{t}")
        a(f"v_bfe_u32 v{u}, v{t}, 1, 1")
        a(f"v_lshlrev_b32 v{u}, 2, v{u}")
        a(f"v_and_b32 v{w}, 7, v{self.V_LANE}")
        a(f"v_xor_b32 v{u}, v{u}, v{w}")
        a(f"v_lshlrev_b32 v{u}, 4, v{u}")
        a(f"v_lshlrev_b32 v{t}, 10, v{t}")
        a(f"v_add_u32 v{t}, v{t}, v{u}")
        a(f"s_lshl_b32 s{s_t0}, s{s_ct}, 7")
        a(f"v_add_u32 v{self.V_WD}, s{s_t0}, v{t}")
        a(f"s_mul_i32 s{s_su}, s{s_tt}, 22")
        a(f"s_cmp_eq_u32 s{s_tt}, 3")
        a(f"s_cselect_b32 s{s_t0}, 1, 0")
        a(f"s_sub_u32 s{s_pw0}, s{s_su}, s{s_t0}")

    def p2_issue_s1(self):
        a = self.a
        save_su = s_pw1
        a(f"s_mov_b32 s{save_su}, s{s_su}")
        self.p2_setup_dma()
        a(f"s_mov_b32 s{s_su}, s{save_su}")
        a(f"s_lshl_b32 s{s_t3}, s{s_pw0}, 14")
        a(f"s_mul_i32 s{s_t4}, s{s_tt}, {S1N * 2048}")
        a(f"s_lshl_b32 s{s_t5}, s{s_ch}, 10")
        a(f"s_add_u32 s{s_t4}, s{s_t4}, s{s_t5}")
        for i in range(S1N):
            self.dma(self.V_WD, R_WD, f"s{s_t3}", f"s{s_t4}")
            if i < S1N - 1:
                a(f"s_add_u32 s{s_t3}, s{s_t3}, 16384")
                a(f"s_add_u32 s{s_t4}, s{s_t4}, 2048")

    def phase2(self):
        a = self.a
        AD = self.P_AD
        t, u, w = self.V_T, self.V_T + 1, self.V_T + 2
        a(f"v_lshrrev_b32 v{t}, 5, v{self.V_LANE}")
        a(f"v_lshlrev_b32 v{t}, 2, v{t}")
        a(f"v_bfe_u32 v{w}, v{self.V_LANE}, 2, 2")
        a(f"v_add_u32 v{t}, v{t}, v{w}")
        a(f"v_lshlrev_b32 v{t}, 7, v{t}")
        a(f"v_lshrrev_b32 v{w}, 1, v{w}")
        a(f"v_lshlrev_b32 v{w}, 6, v{w}")
        a(f"v_add_u32 v{t}, v{t}, v{w}")
        a(f"v_bfe_u32 v{w}, v{self.V_LANE}, 4, 1")
        a(f"v_lshlrev_b32 v{w}, 5, v{w}")
        a(f"v_add_u32 v{t}, v{t}, v{w}")
        a(f"v_and_b32 v{w}, 3, v{self.V_LANE}")
        a(f"v_lshlrev_b32 v{w}, 3, v{w}")
        a(f"v_add_u32 v{t}, v{t}, v{w}")
        a(f"s_mul_i32 s{s_t0}, s{s_tt}, {S1N * 2048}")
        a(f"v_add_u32 v{AD}, s{s_t0}, v{t}")
        a(f"v_xor_b32 v{AD + 1}, 64, v{AD}")
        a(f"s_mul_i32 s{s_t0}, s{s_tt}, {S2N * 2048}")
        a(f"v_add_u32 v{AD + 2}, s{s_t0}, v{t}")
        a(f"v_xor_b32 v{AD + 3}, 64, v{AD + 2}")
        a("s_waitcnt vmcnt(0)")
        a("s_barrier")
        for i in range(S1N):
            for cc in range(2):
                f = self.P_W1 + 8 * i + 4 * cc
                a(f"ds_read_b64_tr_b16 {vr(f, 2)}, v{AD + cc} offset:{i * 2048}")
                a(f"ds_read_b64_tr_b16 {vr(f + 2, 2)}, v{AD + cc} offset:{i * 2048 + 1024}")
            if i % 3 == 2:
                a("s_waitcnt lgkmcnt(0)")
        for r in range(32):
            a(f"v_mov_b32 v{self.P_ACC + r}, 0")
        xo = AD + 4
        a(f"v_and_b32 v{t}, 31, v{self.V_LANE}")
        a(f"s_lshl_b32 s{s_t0}, s{s_ttg}, 5")
        a(f"v_add_u32 v{t}, s{s_t0}, v{t}")
        a(f"v_lshlrev_b32 v{t}, 10, v{t}")
        a(f"s_lshl_b32 s{s_t0}, s{s_ct}, 7")
        a(f"s_lshl_b32 s{s_t1}, s{s_tt}, 5")
        a(f"s_add_u32 s{s_t0}, s{s_t0}, s{s_t1}")
        a(f"v_add_u32 v{t}, s{s_t0}, v{t}")
        a(f"v_lshrrev_b32 v{u}, 5, v{self.V_LANE}")
        a(f"v_lshlrev_b32 v{w}, 3, v{u}")
        a(f"v_add_u32 v{xo}, v{t}, v{w}")
        a(f"v_lshlrev_b32 v{w}, 4, v{u}")
        a(f"v_add_u32 v{xo + 1}, v{t}, v{w}")
        a("s_waitcnt lgkmcnt(0)")
        a("s_barrier")
        a(f"buffer_load_dwordx2 {vr(self.P_X, 2)}, v{xo}, {srd(R_X)}, 0 offen")
        a(f"buffer_load_dwordx2 {vr(self.P_X + 2, 2)}, v{xo}, {srd(R_X)}, 0 offen offset:16")
        self.wait_counter(s_m2, CNT_H, 8, self.V_T2 + 3, self.V_T2 + 2, "h")
        self.stamp(7)
        ho = AD + 6
        a(f"v_lshlrev_b32 v{ho}, 4, v{self.V_LANE}")
        a(f"s_mul_i32 s{s_t0}, s{s_ttg}, 86")
        a(f"s_add_u32 s{s_t0}, s{s_t0}, s{s_pw0}")
        a(f"s_lshl_b32 s{s_xr0}, s{s_t0}, 10")
        a(f"s_lshl_b32 s{s_t0}, s{s_ttg}, 5")
        a(f"s_lshl_b32 s{s_t1}, s{s_tt}, 3")
        a(f"s_add_u32 s{s_t0}, s{s_t0}, s{s_t1}")
        a(f"s_lshl_b32 s{s_t0}, s{s_t0}, 10")
        a(f"s_add_u32 s{s_xr1}, s{s_t0}, {WS_O}")
        a(f"s_add_u32 s{s_t0}, s{s_pw0}, {S1N}")
        a(f"s_lshl_b32 s{s_wr0}, s{s_t0}, 14")
        a(f"s_lshl_b32 s{s_wr1}, s{s_tt}, 17")
        a(f"s_mul_i32 s{s_wd}, s{s_tt}, {S2N * 2048}")
        a(f"s_lshl_b32 s{s_t0}, s{s_ch}, 10")
        a(f"s_add_u32 s{s_wd}, s{s_wd}, s{s_t0}")

        vm = []

        def issue(tag):
            vm.append(tag)

        def wait_for(tag):
            idx = max(i for i, x in enumerate(vm) if x == tag)
            a(f"s_waitcnt vmcnt({len(vm) - 1 - idx})")

        def hload(i):
            f = self.P_H + 4 * (i % self.HD)
            a(f"s_add_u32 s{s_t0}, s{s_xr0}, {1024 * i}")
            a(f"buffer_load_dwordx4 {vr(f, 4)}, v{ho}, {srd(R_WS)}, s{s_t0} offen sc1")
            issue(("h", i))

        def oload(i):
            f = self.P_H + 4 * ((22 + i) % self.HD)
            a(f"s_add_u32 s{s_t0}, s{s_xr1}, {1024 * i}")
            a(f"buffer_load_dwordx4 {vr(f, 4)}, v{ho}, {srd(R_WS)}, s{s_t0} offen sc1")
            issue(("h", 22 + i))

        def s2piece(i):
            if i < 9:
                a(f"s_add_u32 s{s_t0}, s{s_wr0}, {16384 * i}")
                r = R_WD
            else:
                a(f"s_add_u32 s{s_t0}, s{s_wr1}, {16384 * (i - 9)}")
                r = R_WO
            a(f"s_add_u32 s{s_t1}, s{s_wd}, {2048 * i}")
            self.dma(self.V_WD, r, f"s{s_t0}", f"s{s_t1}")
            issue(("s2", i))

        def mm(i, wf):
            f = self.P_H + 4 * (i % self.HD)
            for cc in range(2):
                acc = self.P_ACC + 16 * cc
                a(f"{MFMA} {vr(acc, 16)}, {vr(wf + 4 * cc, 4)}, {vr(f, 4)}, {vr(acc, 16)}")

        issue("x"); issue("x")
        for i in range(self.HD):
            hload(i)
        s2i = 0
        for i in range(S1N):
            wait_for(("h", i))
            mm(i, self.P_W1 + 8 * i)
            if i + self.HD < 22:
                hload(i + self.HD)
            for _ in range(2 if i < 4 else 1):
                if s2i < S2N:
                    s2piece(s2i); s2i += 1
        assert s2i == S2N
        wait_for(("s2", S2N - 1))
        a("s_barrier")

        def wreads(slot, st):
            for cc in range(2):
                f = self.P_WB + 8 * st + 4 * cc
                a(f"ds_read_b64_tr_b16 {vr(f, 2)}, v{AD + 2 + cc} offset:{slot * 2048}")
                a(f"ds_read_b64_tr_b16 {vr(f + 2, 2)}, v{AD + 2 + cc} offset:{slot * 2048 + 1024}")

        wreads(0, 0)
        for i in range(S1N, 22):
            slot = i - S1N
            wreads(slot + 1, (slot + 1) & 1)
            skip = None
            if i == 21:
                skip = a.newlabel("p2skip")
                a(f"s_cmp_ge_u32 s{s_tt}, 2")
                a(f"s_cbranch_scc1 {skip}")
            wait_for(("h", i))
            a("s_waitcnt lgkmcnt(4)")
            mm(i, self.P_WB + 8 * (slot & 1))
            if i == S1N:
                hload(21)
            if skip:
                a.label(skip)
        a("s_waitcnt vmcnt(0)")
        vm.clear()
        self.wait_counter(s_m2, CNT_O, 8, self.V_T2 + 3, self.V_T2 + 2, "o")
        self.stamp(8)
        for i in range(8):
            oload(i)
        for i in range(8):
            slot = 9 + i
            if i < 7:
                wreads(slot + 1, (slot + 1) & 1)
            wait_for(("h", 22 + i))
            a(f"s_waitcnt lgkmcnt({4 if i < 7 else 0})")
            mm(22 + i, self.P_WB + 8 * (slot & 1))
        a("s_barrier")
        ra = AD + 8
        a(f"v_lshlrev_b32 v{ra}, 4, v{self.V_LANE}")
        a(f"s_lshl_b32 s{s_t0}, s{s_ch}, 15")
        a(f"s_lshl_b32 s{s_t1}, s{s_tt}, 11")
        a(f"s_add_u32 s{s_t0}, s{s_t0}, s{s_t1}")
        a(f"v_add_u32 v{ra}, s{s_t0}, v{ra}")
        for q in range(4):
            src = self.P_ACC + 8 * q
            a(f"ds_write_b128 v{ra}, {vr(src, 4)} offset:{q * 8192}")
            a(f"ds_write_b128 v{ra}, {vr(src + 4, 4)} offset:{q * 8192 + 1024}")
        a(f"v_lshlrev_b32 v{ra + 1}, 4, v{self.V_LANE}")
        a(f"s_lshl_b32 s{s_t0}, s{s_ch}, 15")
        a(f"s_lshl_b32 s{s_t1}, s{s_tt}, 13")
        a(f"s_add_u32 s{s_t0}, s{s_t0}, s{s_t1}")
        a(f"v_add_u32 v{ra + 1}, s{s_t0}, v{ra + 1}")
        a("s_waitcnt lgkmcnt(0)")
        a("s_barrier")
        R = self.P_W1
        for s in range(4):
            a(f"ds_read_b128 {vr(R + 8 * s, 4)}, v{ra + 1} offset:{s * 2048}")
            a(f"ds_read_b128 {vr(R + 8 * s + 4, 4)}, v{ra + 1} offset:{s * 2048 + 1024}")
        X = self.P_X
        xs = self.P_WB
        for r in range(4):
            a(f"v_lshlrev_b32 v{xs + 2 * r}, 16, v{X + r}")
            a(f"v_and_b32 v{xs + 2 * r + 1}, 0xffff0000, v{X + r}")
        a("s_waitcnt lgkmcnt(0)")
        for r in range(8):
            a(f"v_add_f32 v{R + r}, v{R + r}, v{R + 8 + r}")
            a(f"v_add_f32 v{R + 16 + r}, v{R + 16 + r}, v{R + 24 + r}")
        for r in range(8):
            a(f"v_add_f32 v{R + r}, v{R + r}, v{R + 16 + r}")
        for r in range(8):
            a(f"v_add_f32 v{R + r}, v{R + r}, v{xs + r}")
        pk = self.P_H
        for r in range(4):
            a(f"v_cvt_pk_bf16_f32 v{pk + r}, v{R + 2 * r}, v{R + 2 * r + 1}")
        a(f"v_permlane32_swap_b32 v{pk}, v{pk + 2}")
        a(f"v_permlane32_swap_b32 v{pk + 1}, v{pk + 3}")
        self.mk_srd(R_OUT, S_OUT, 2048 * 1024)
        a(f"buffer_store_dwordx4 {vr(pk, 4)}, v{xo + 1}, {srd(R_OUT)}, 0 offen")
        self.stamp(9)

    def build(self):
        a = self.a
        self.prologue()
        self.zero_region()
        a(f"s_cmp_ge_u32 s{s_nt}, 2")
        a("s_cbranch_scc1 L_ffn")
        self.att()
        a.label("L_ffn")
        self.ffn()
        a.label("L_phase2")
        if self.stop_after != "p1":
            self.phase2()
        a.label("L_end")
        a("s_endpgm")
        body = a.finalize()
        hdr = open("parallel_sum__linear_kernel_hedgehog__glu_gated_reglu__prompt.s.ref").read()
        out = hdr.split("; Override launch geometry")[0]
        out += f"; @launch grid=(256,1,1) block=(512,1,1) lds={LDS_BYTES}\n"
        out += '.amdgcn_target "amdgcn-amd-amdhsa--gfx950"\n.text\n'
        out += f".globl {NAME}\n.p2align 8\n.type {NAME},@function\n{NAME}:\n"
        out += body
        out += '.section .rodata,"a"\n.p2align 6\n'
        out += f".amdhsa_kernel {NAME}\n  .amdhsa_next_free_vgpr 256\n  .amdhsa_next_free_sgpr 102\n  .amdhsa_accum_offset 256\n"
        out += "  .amdhsa_group_segment_fixed_size 0\n  .amdhsa_kernarg_size 88\n  .amdhsa_user_sgpr_count 2\n"
        out += "  .amdhsa_user_sgpr_kernarg_segment_ptr 1\n  .amdhsa_system_sgpr_workgroup_id_x 1\n.end_amdhsa_kernel\n"
        return out


if __name__ == "__main__":
    import argparse
    ap = argparse.ArgumentParser()
    ap.add_argument("-o", default="parallel_sum__linear_kernel_hedgehog__glu_gated_reglu__prompt.s")
    ap.add_argument("--stop", default=None)
    ap.add_argument("--stamps", action="store_true")
    args = ap.parse_args()
    g = Gen(stop_after=args.stop, stamps=args.stamps)
    text = g.build()
    open(args.o, "w").write(text)
    print(f"wrote {args.o}: {len(text)} bytes, {text.count(chr(10))} lines, nops inserted {g.a.nops_inserted}")
```
